```python
import torch

def _softmax(x, axis=-1):
    return torch.softmax(x, dim=axis)
def _gelu(x):
    return torch.nn.functional.gelu(x, approximate="tanh")
def _silu(x):
    return torch.nn.functional.silu(x)
def _sigmoid(x):
    return torch.sigmoid(x)
def _layernorm(x, axis=-1, eps=1e-5):
    m = x.mean(dim=axis, keepdim=True)
    v = x.var(dim=axis, keepdim=True, unbiased=False)
    return (x - m) / torch.sqrt(v + eps)
def _scatter_add(tgt, idx, src, axis=0):
    return tgt.clone().index_add_(axis, idx, src)
def _segment_sum(src, seg, n):
    out = torch.zeros((n,) + src.shape[1:], dtype=src.dtype)
    return out.index_add_(0, seg, src)
def _pad(x, pw):
    flat = tuple(v for pair in reversed(pw) for v in pair)
    return torch.nn.functional.pad(x, flat)

kernel_name = 'interleave_layers__sliding_local_dilated__dense_activation_mish__prompt'

def setup_inputs():

    _w = (lambda a: (lambda t: t.to(torch.bfloat16) if t.is_floating_point() else t)(torch.as_tensor(a)))
    def _A_setup():
        B, S, D = 1, 2048, 576
        return {
            "x": _w((lambda *s: torch.randn(*s, dtype=torch.bfloat16) * 0.05)(B, S, D)),
            "wqkv": _w((lambda *s: torch.randn(*s, dtype=torch.bfloat16) * 0.05)(D, 3 * D)),
            "wo": _w((lambda *s: torch.randn(*s, dtype=torch.bfloat16) * 0.05)(D, D)),
        }
    _A_in = _A_setup()

    def _B_setup():
        B, S, D, F = 1, 2048, 576, 4608
        return {
            "x": _w((lambda *s: torch.randn(*s, dtype=torch.bfloat16) * 0.05)(B, S, D)),
            "w1": _w((lambda *s: torch.randn(*s, dtype=torch.bfloat16) * 0.8)(D, F) * (D ** -0.5)),
            "b1": _w((lambda *s: torch.randn(*s, dtype=torch.bfloat16) * 0.8)(F)),
            "w2": _w((lambda *s: torch.randn(*s, dtype=torch.bfloat16) * 0.8)(F, D) * (F ** -0.5)),
        }
    _B_in = _B_setup()

    return {
        "A_x": _A_in["x"],
        "A_wqkv": _A_in["wqkv"],
        "A_wo": _A_in["wo"],
        "B_x": _B_in["x"],
        "B_w1": _B_in["w1"],
        "B_b1": _B_in["b1"],
        "B_w2": _B_in["w2"],
    }

def reference(A_x, A_wqkv, A_wo, B_x, B_w1, B_b1, B_w2):
    def _A_ref(x, wqkv, wo):
        B, S, D = x.shape
        H = 32; Dh = D // H
        W, dil = 8, 2
        qkv = (lambda x, *d: x.permute(*d))((x @ wqkv).reshape(B, S, 3, H, Dh), 2, 0, 3, 1, 4)
        q, k, v = qkv[0], qkv[1], qkv[2]
        scale = Dh ** -0.5
        pos = torch.arange(S)
        off = torch.arange(W) * dil
        idx = pos[:, None] - off[None, :]
        mask = idx >= 0
        idx_c = torch.where(mask, idx, 0).reshape(-1)
        kg = k[:, :, idx_c, :].reshape(B, H, S, W, Dh)
        vg = v[:, :, idx_c, :].reshape(B, H, S, W, Dh)
        logits = torch.einsum("bhsd,bhswd->bhsw", q, kg) * scale
        logits = torch.where(mask[None, None, :, :], logits, -1e9)
        attn = _softmax(logits, axis=-1)
        o = torch.einsum("bhsw,bhswd->bhsd", attn, vg)
        return (lambda x, *d: x.permute(*d))(o, 0, 2, 1, 3).reshape(B, S, D) @ wo

    def _B_ref(x, w1, b1, w2):
        h = torch.einsum("bsd,df->bsf", x, w1) + b1
        sp = torch.log1p(torch.exp(-torch.abs(h))) + torch.where(h > 0, h, torch.zeros_like(h))
        act = h * torch.tanh(sp)
        return torch.einsum("bsf,fd->bsd", act, w2)

    x = A_x
    x = x + _A_ref(_layernorm(x, axis=-1), A_wqkv, A_wo)
    x = x + _B_ref(_layernorm(x, axis=-1), B_w1, B_b1, B_w2)
    x = x + _A_ref(_layernorm(x, axis=-1), A_wqkv, A_wo)
    x = x + _B_ref(_layernorm(x, axis=-1), B_w1, B_b1, B_w2)
    return x
```

```python
NAME = "interleave_layers__sliding_local_dilated__dense_activation_mish__prompt"

HEADER = """; Kernarg layout for this problem (80 bytes, ptrs only, base s[0:1]):
"""

ARG = dict(x=0, wqkv=8, wo=16, bx=24, w1=32, b1=40, w2=48, out=56, dbg=64, ws=72)
S, D, F, H, DH = 2048, 576, 4608, 32, 18
SIZE = dict(x=S * D * 2, wqkv=D * 3 * D * 2, wo=D * D * 2, w1=D * F * 2, b1=F * 2,
            w2=F * D * 2, out=S * D * 2, dbg=256, ws=268435456)


class Kernel:
    def __init__(self, label, vgpr=256, agpr=0, sgpr=102, extra_kd=()):
        self.label = label
        self.lines = []
        self.vgpr = vgpr
        self.agpr = agpr
        self.sgpr = sgpr
        self.extra_kd = list(extra_kd)
        self._uid = 0

    def __call__(self, text):
        for ln in text.strip("\n").split("\n"):
            s = ln.strip()
            if not s:
                continue
            if s.endswith(":"):
                self.lines.append(s)
            else:
                self.lines.append("    " + s)

    def lab(self, base):
        self._uid += 1
        return f"L_{self.label[:-7]}_{base}_{self._uid}"

    def text(self):
        return (f".globl {self.label}\n.p2align 8\n.type {self.label},@function\n"
                f"{self.label}:\n" + "\n".join(self.lines) + "\n")

    def descriptor(self):
        acc = (self.vgpr + 3) // 4 * 4
        nfv = acc + self.agpr if self.agpr else self.vgpr
        kd = [f".amdhsa_kernel {self.label}",
              f"  .amdhsa_next_free_vgpr {nfv}",
              f"  .amdhsa_next_free_sgpr {self.sgpr}",
              f"  .amdhsa_accum_offset {acc}",
              "  .amdhsa_group_segment_fixed_size 0",
              "  .amdhsa_kernarg_size 80",
              "  .amdhsa_user_sgpr_count 2",
              "  .amdhsa_user_sgpr_kernarg_segment_ptr 1",
              "  .amdhsa_system_sgpr_workgroup_id_x 1"]
        kd += ["  " + e for e in self.extra_kd]
        kd.append(".end_amdhsa_kernel")
        return ".p2align 6\n" + "\n".join(kd) + "\n"

    def load_ptr(self, d, arg):
        self(f"s_load_dwordx2 s[{d}:{d+1}], s[0:1], {ARG[arg]}")

    def finish_srd(self, d, nbytes, off=0):
        if off:
            self(f"s_add_u32 s{d}, s{d}, {off}")
            self(f"s_addc_u32 s{d+1}, s{d+1}, 0")
        self(f"s_mov_b32 s{d+2}, {nbytes}")
        self(f"s_mov_b32 s{d+3}, 0x00020000")


def build(launches, kernels):
    out = [HEADER]
    for (label, g, b, lds) in launches:
        out.append(f"; @launch kernel={label} grid=({g},1,1) block=({b},1,1) lds={lds}\n")
    out.append('.amdgcn_target "amdgcn-amd-amdhsa--gfx950"\n.text\n')
    for k in kernels:
        out.append(k.text())
    out.append('.section .rodata,"a"\n')
    for k in kernels:
        out.append(k.descriptor())
    return "".join(out)
```

```python
import sys
from asmlib import *

WS = dict(xn=0, qkv=4 << 20, o=16 << 20, x1=20 << 20, act=24 << 20, x2=48 << 20, x3=52 << 20)


def src(k, d, name, nbytes):
    if name in ARG:
        k.load_ptr(d, name)
        return lambda: k.finish_srd(d, nbytes)
    k.load_ptr(d, "ws")
    return lambda: k.finish_srd(d, nbytes, WS[name])


def k_ln(label, xin):
    k = Kernel(label, vgpr=64)
    k("s_cmp_ge_u32 s2, 2048\ns_cbranch_scc1 L_end_" + label)
    f1 = src(k, 4, xin, S * D * 2)
    f2 = src(k, 8, "xn", S * D * 2)
    k("s_waitcnt lgkmcnt(0)")
    f1(); f2()
    k("""
    s_mul_i32 s12, s2, 1152
    v_lshlrev_b32 v1, 5, v0
    v_cmp_gt_u32 vcc, 36, v0
    v_mov_b32 v40, 0x7fffffff
    s_nop 1
    v_cndmask_b32 v1, v40, v1, vcc
    buffer_load_dwordx4 v[4:7], v1, s[4:7], s12 offen
    buffer_load_dwordx4 v[8:11], v1, s[4:7], s12 offen offset:16
    s_waitcnt vmcnt(0)
    """)
    for i in range(8):
        k(f"v_lshlrev_b32 v{12+2*i}, 16, v{4+i}\nv_and_b32 v{13+2*i}, 0xffff0000, v{4+i}")
    k("v_mov_b32 v30, 0")
    for i in range(16):
        k(f"v_add_f32 v30, v30, v{12+i}")

    def allsum(r):
        for m in (1, 2, 4, 8, 16, 32):
            k(f"v_xor_b32 v31, {m}, v0\nv_lshlrev_b32 v31, 2, v31\nds_bpermute_b32 v32, v31, v{r}\n"
              f"s_waitcnt lgkmcnt(0)\nv_add_f32 v{r}, v{r}, v32")
    allsum(30)
    k("v_mul_f32 v30, 0x3ae38e39, v30")
    k("v_mov_b32 v33, 0")
    for i in range(16):
        k(f"v_sub_f32 v{12+i}, v{12+i}, v30\nv_fmac_f32 v33, v{12+i}, v{12+i}")
    k("v_cndmask_b32 v33, 0, v33, vcc")
    allsum(33)
    k("""
    v_mul_f32 v33, 0x3ae38e39, v33
    v_add_f32 v33, 0x3727c5ac, v33
    v_rsq_f32 v33, v33
    s_nop 1
    """)
    for i in range(16):
        k(f"v_mul_f32 v{12+i}, v{12+i}, v33")
    for i in range(8):
        k(f"v_cvt_pk_bf16_f32 v{4+i}, v{12+2*i}, v{13+2*i}")
    k("""
    buffer_store_dwordx4 v[4:7], v1, s[8:11], s12 offen
    buffer_store_dwordx4 v[8:11], v1, s[8:11], s12 offen offset:16
    """)
    k("L_end_" + label + ":\ns_endpgm")
    return k, (label, 2048, 64, 0)


def k_gemm(label, a, b, c, K, N, mode, res=None):
    k = Kernel(label, vgpr=64)
    nt = N // 32
    tiles = 64 * nt
    k(f"s_cmp_ge_u32 s2, {tiles}\ns_cbranch_scc1 L_end_" + label)
    fs = [src(k, 4, a, S * K * 2), src(k, 8, b, K * N * 2), src(k, 12, c, S * N * 2)]
    if mode == 1:
        fs.append(src(k, 16, res, S * N * 2))
    if mode == 2:
        fs.append(src(k, 16, "b1", F * 2))
    k("s_waitcnt lgkmcnt(0)")
    for f in fs:
        f()
    k(f"""
    s_and_b32 s20, s2, 63
    s_lshr_b32 s21, s2, 6
    s_lshl_b32 s20, s20, 5
    s_lshl_b32 s21, s21, 5
    v_and_b32 v1, 31, v0
    v_lshrrev_b32 v2, 5, v0
    v_add_u32 v3, s20, v1
    s_mov_b32 s22, {K*2}
    v_mul_lo_u32 v3, v3, s22
    v_lshl_add_u32 v3, v2, 4, v3
    v_add_u32 v4, s21, v1
    v_lshlrev_b32 v4, 1, v4
    s_mov_b32 s22, {N*2*8}
    v_mul_lo_u32 v5, v2, s22
    v_add_u32 v5, v5, v4
    s_mov_b32 s23, 0
    s_mov_b32 s24, 0
    """)
    for i in range(16):
        k(f"v_mov_b32 v{16+i}, 0")
    loop = k.lab("loop")
    k(loop + ":")
    k("buffer_load_dwordx4 v[8:11], v3, s[4:7], s23 offen")
    for j in range(8):
        k(f"s_add_u32 s25, s24, {j*N*2}")
        k(f"buffer_load_ushort v{40+j}, v5, s[8:11], s25 offen")
    k("s_waitcnt vmcnt(0)")
    for j in range(4):
        k(f"v_lshl_or_b32 v{12+j}, v{41+2*j}, 16, v{40+2*j}")
    k(f"""
    s_nop 1
    v_mfma_f32_32x32x16_bf16 v[16:31], v[8:11], v[12:15], v[16:31]
    s_add_u32 s23, s23, 32
    s_add_u32 s24, s24, {16*N*2}
    s_cmp_lt_u32 s23, {K*2}
    s_cbranch_scc1 {loop}
    s_nop 15
    v_lshlrev_b32 v6, 2, v2
    v_add_u32 v6, s20, v6
    s_mov_b32 s22, {N*2}
    v_mul_lo_u32 v6, v6, s22
    v_add_u32 v6, v6, v4
    """)
    if mode == 2:
        k("buffer_load_ushort v32, v4, s[16:19], 0 offen\ns_waitcnt vmcnt(0)\nv_lshlrev_b32 v32, 16, v32")
    for i in range(16):
        row = 8 * (i >> 2) + (i & 3)
        k(f"s_mov_b32 s25, {row*N*2}")
        r = 16 + i
        if mode == 1:
            k(f"buffer_load_ushort v32, v6, s[16:19], s25 offen\ns_waitcnt vmcnt(0)\n"
              f"v_lshlrev_b32 v32, 16, v32\nv_add_f32 v{r}, v{r}, v32")
        if mode == 2:
            k(f"""
            v_add_f32 v{r}, v{r}, v32
            v_mul_f32 v33, 0x3fb8aa3b, v{r}
            v_exp_f32 v33, v33
            s_nop 1
            v_fma_f32 v34, v33, 0.5, 1.0
            v_fma_f32 v34, v33, v34, 1.0
            v_rcp_f32 v34, v34
            s_nop 1
            v_fma_f32 v{r}, -v{r}, v34, v{r}
            """)
        k(f"v_cvt_pk_bf16_f32 v{r}, v{r}, v{r}\nbuffer_store_short v{r}, v6, s[12:15], s25 offen")
    k("L_end_" + label + ":\ns_endpgm")
    return k, (label, tiles, 64, 0)


def k_attn(label):
    k = Kernel(label, vgpr=128)
    k("s_cmp_ge_u32 s2, 1024\ns_cbranch_scc1 L_end_" + label)
    fs = [src(k, 4, "qkv", S * 3 * D * 2), src(k, 8, "o", S * D * 2)]
    k("s_waitcnt lgkmcnt(0)")
    for f in fs:
        f()
    k("""
    s_lshl_b32 s12, s2, 1
    v_lshrrev_b32 v1, 5, v0
    v_add_u32 v1, s12, v1
    v_and_b32 v2, 31, v0
    v_mul_u32_u24 v2, 36, v2
    v_mul_u32_u24 v3, 3456, v1
    v_add_u32 v3, v3, v2
    """)
    for j in range(9):
        k(f"buffer_load_dword v{10+j}, v3, s[4:7], 0 offen offset:{4*j}")
    k("s_waitcnt vmcnt(0)")
    for j in range(9):
        k(f"v_lshlrev_b32 v{20+2*j}, 16, v{10+j}\nv_and_b32 v{21+2*j}, 0xffff0000, v{10+j}")
    for w in range(8):
        k(f"v_subrev_u32 v4, {2*w}, v1\nv_max_i32 v4, 0, v4\nv_mul_u32_u24 v5, 3456, v4\nv_add_u32 v5, v5, v2")
        for j in range(9):
            k(f"buffer_load_dword v{10+j}, v5, s[4:7], 0 offen offset:{1152+4*j}")
        k(f"s_waitcnt vmcnt(0)\nv_mov_b32 v{40+w}, 0")
        for j in range(9):
            k(f"v_lshlrev_b32 v6, 16, v{10+j}\nv_and_b32 v7, 0xffff0000, v{10+j}\n"
              f"v_fmac_f32 v{40+w}, v6, v{20+2*j}\nv_fmac_f32 v{40+w}, v7, v{21+2*j}")
        k(f"v_mul_f32 v{40+w}, 0x3e715bef, v{40+w}")
        k(f"v_cmp_le_u32 vcc, {2*w}, v1\nv_mov_b32 v6, 0xce6e6b28\ns_nop 1\nv_cndmask_b32 v{40+w}, v6, v{40+w}, vcc")
    k("v_mov_b32 v8, v40")
    for w in range(1, 8):
        k(f"v_max_f32 v8, v8, v{40+w}")
    k("v_mov_b32 v9, 0")
    for w in range(8):
        k(f"v_sub_f32 v{40+w}, v{40+w}, v8\nv_mul_f32 v{40+w}, 0x3fb8aa3b, v{40+w}\nv_exp_f32 v{40+w}, v{40+w}\n"
          f"s_nop 1\nv_add_f32 v9, v9, v{40+w}")
    k("v_rcp_f32 v9, v9\ns_nop 1")
    for j in range(18):
        k(f"v_mov_b32 v{50+j}, 0")
    for w in range(8):
        k(f"v_mul_f32 v{40+w}, v{40+w}, v9")
        k(f"v_subrev_u32 v4, {2*w}, v1\nv_max_i32 v4, 0, v4\nv_mul_u32_u24 v5, 3456, v4\nv_add_u32 v5, v5, v2")
        for j in range(9):
            k(f"buffer_load_dword v{10+j}, v5, s[4:7], 0 offen offset:{2304+4*j}")
        k("s_waitcnt vmcnt(0)")
        for j in range(9):
            k(f"v_lshlrev_b32 v6, 16, v{10+j}\nv_and_b32 v7, 0xffff0000, v{10+j}\n"
              f"v_fmac_f32 v{50+2*j}, v6, v{40+w}\nv_fmac_f32 v{51+2*j}, v7, v{40+w}")
    k("v_mul_u32_u24 v3, 1152, v1\nv_add_u32 v3, v3, v2")
    for j in range(9):
        k(f"v_cvt_pk_bf16_f32 v{10+j}, v{50+2*j}, v{51+2*j}\nbuffer_store_dword v{10+j}, v3, s[8:11], 0 offen offset:{4*j}")
    k("L_end_" + label + ":\ns_endpgm")
    return k, (label, 1024, 64, 0)


def k_empty(label):
    k = Kernel(label, vgpr=8)
    k("s_endpgm")
    return k, (label, 256, 256, 0)


def main(n_front, n_back, path):
    ks, ls = [], []

    def add(kl):
        if kl[0].label not in [q.label for q in ks]:
            ks.append(kl[0])
        ls.append(kl[1])
    for _ in range(n_front):
        add(k_empty("empty_kernel"))
    xin = "x"
    for L, (mid, xout) in enumerate((("x1", "x2"), ("x3", "out"))):
        add(k_ln(f"lna{L}_kernel", xin))
        add(k_gemm("qkv_kernel", "xn", "wqkv", "qkv", D, 3 * D, 0))
        add(k_attn("attn_kernel"))
        add(k_gemm(f"wo{L}_kernel", "o", "wo", mid, D, D, 1, xin))
        add(k_ln(f"lnb{L}_kernel", mid))
        add(k_gemm("ffa_kernel", "xn", "w1", "act", D, F, 2))
        add(k_gemm(f"ffb{L}_kernel", "act", "w2", xout, F, D, 1, mid))
        xin = xout
    for _ in range(n_back):
        add(k_empty("empty_kernel"))
    open(path, "w").write(build(ls, ks))


if __name__ == "__main__":
    main(int(sys.argv[1]), int(sys.argv[2]), sys.argv[3])
```
